```python
import torch

def _softmax(x, axis=-1):
    return torch.softmax(x, dim=axis)
def _gelu(x):
    return torch.nn.functional.gelu(x, approximate="tanh")
def _silu(x):
    return torch.nn.functional.silu(x)
def _sigmoid(x):
    return torch.sigmoid(x)
def _layernorm(x, axis=-1, eps=1e-5):
    m = x.mean(dim=axis, keepdim=True)
    v = x.var(dim=axis, keepdim=True, unbiased=False)
    return (x - m) / torch.sqrt(v + eps)
def _scatter_add(tgt, idx, src, axis=0):
    return tgt.clone().index_add_(axis, idx, src)
def _segment_sum(src, seg, n):
    out = torch.zeros((n,) + src.shape[1:], dtype=src.dtype)
    return out.index_add_(0, seg, src)
def _pad(x, pw):
    flat = tuple(v for pair in reversed(pw) for v in pair)
    return torch.nn.functional.pad(x, flat)

kernel_name = 'standalone__mha_block_cached__near_ridge'

def setup_inputs():

    _w = (lambda a: (lambda t: t.to(torch.bfloat16) if t.is_floating_point() else t)(torch.as_tensor(a)))
    B, Sq, D = 8, 160, 640
    H, Sk, Dh = 32, 512, 192
    return {
        "x": _w((lambda *s: torch.randn(*s, dtype=torch.bfloat16) * 0.8)(B, Sq, D)),
        "k_cache": _w((lambda *s: torch.randn(*s, dtype=torch.bfloat16) * 0.8)(B, H, Sk, Dh)),
        "v_cache": _w((lambda *s: torch.randn(*s, dtype=torch.bfloat16) * 0.05)(B, H, Sk, Dh)),
        "wq": _w((lambda *s: torch.randn(*s, dtype=torch.bfloat16) * 0.8)(D, H * Dh) * (D ** -0.5)),
        "wo": _w((lambda *s: torch.randn(*s, dtype=torch.bfloat16) * 0.05)(H * Dh, D) * ((H * Dh) ** -0.5)),
    }

def reference(x, k_cache, v_cache, wq, wo):
    B, Sq, D = x.shape
    H, Dh = 32, 192
    q = (lambda x, *d: x.permute(*d))((x @ wq).reshape(B, Sq, H, Dh), 0, 2, 1, 3)
    scores = torch.einsum("bhqd,bhkd->bhqk", q, k_cache) * (Dh ** -0.5)
    p = _softmax(scores, axis=-1)
    o = torch.einsum("bhqk,bhkd->bhqd", p, v_cache)
    return (lambda x, *d: x.permute(*d))(o, 0, 2, 1, 3).reshape(B, Sq, H * Dh) @ wo
```

```python
class R:
    __slots__=("k","b","n")
    def __init__(s,k,b,n=1): s.k=k; s.b=b; s.n=n
    def __str__(s): return f"{s.k}{s.b}" if s.n==1 else f"{s.k}[{s.b}:{s.b+s.n-1}]"
    def regs(s): return [(s.k,s.b+i) for i in range(s.n)]
    def sub(s,o,n=1):
        assert o+n<=s.n, (str(s),o,n)
        return R(s.k,s.b+o,n)
    def __getitem__(s,i): return s.sub(i,1)
class Neg(R):
    def __init__(s,r): R.__init__(s,r.k,r.b,r.n)
    def __str__(s): return "-"+R.__str__(s)
def V(b,n=1): return R("v",b,n)
def A(b,n=1): return R("a",b,n)
def S(b,n=1): return R("s",b,n)

TRANS=("v_exp_f32","v_rcp_f32","v_log_f32","v_rsq_f32","v_sqrt_f32")
def _regs(ops):
    out=[]
    for o in ops:
        if isinstance(o,R): out+=o.regs()
    return out
def _txt(o):
    return str(o)

class Gen:
    def __init__(s):
        s.out=[]; s.reset()
    def reset(s):
        s.t=0
        s.vm=0; s.lg=0
        s.vm_done=0; s.lg_done=0
        s.pend={}
        s.mfma_w={}
        s.mfma_c={}
        s.valu_w={}
        s.trans_w={}
        s.valu_sw={}
        s.store_r={}
        s.m0_t=-10
        s.nmfma=0; s.ninst=0; s.nops=0
    def text(s): return "\n".join(s.out)+"\n"
    def raw(s,x): s.out.append(x)
    def comment(s,x): s.out.append("    ; "+x)
    def label(s,x): s.out.append(x+":")
    def _emit(s,x,states=1):
        s.out.append("    "+x); s.t+=states; s.ninst+=1
    def nop(s,states):
        while states>0:
            k=min(states,16); s._emit(f"s_nop {k-1}",k); states-=k; s.nops+=1
    def _need(s,tprod,gap):
        have=s.t-tprod-1
        if have<gap: s.nop(gap-have)
    def wait_vm(s,tok):
        if tok<=s.vm_done: return
        n=s.vm-tok
        n=min(n,63)
        s._emit(f"s_waitcnt vmcnt({n})"); s.vm_done=max(s.vm_done,s.vm-n)
    def wait_lg(s,tok):
        if tok<=s.lg_done: return
        n=min(s.lg-tok,15)
        s._emit(f"s_waitcnt lgkmcnt({n})"); s.lg_done=max(s.lg_done,s.lg-n)
    def wait_lg_all(s): s.wait_lg(s.lg)
    def wait_vm_all(s): s.wait_vm(s.vm)
    def _sync_regs(s,regs):
        tv=0; tl=0
        for r in regs:
            p=s.pend.get(r)
            if p:
                if p[0]=="vm": tv=max(tv,p[1])
                else: tl=max(tl,p[1])
        if tv: s.wait_vm(tv)
        if tl: s.wait_lg(tl)
        for r in regs:
            p=s.pend.get(r)
            if p and ((p[0]=="vm" and p[1]<=s.vm_done) or (p[0]=="lg" and p[1]<=s.lg_done)): del s.pend[r]
    def _mfma_dist(s,regs,gap=8):
        t=max([s.mfma_w[r][0] for r in regs if r in s.mfma_w],default=None)
        if t is not None: s._need(t,gap)
    def barrier(s):
        s._emit("s_barrier")
    def salu(s,op,*ops,m0=False):
        s._emit(f"{op} "+", ".join(_txt(o) for o in ops))
        if m0 or (ops and str(ops[0])=="m0"): s.m0_t=s.t-1
    def valu(s,op,dst,*src,mods="",extra_dst=(),sdst=None):
        rd=_regs(src); wr=_regs([dst])+_regs(extra_dst)
        if op.startswith("v_fmac") or op.startswith("v_permlane"): rd=rd+_regs([dst])
        if op.startswith("v_permlane"): wr=wr+_regs(src)
        s._sync_regs(rd+wr)
        s._mfma_dist(rd+wr,8)
        tc=max([s.mfma_c[r] for r in wr if r in s.mfma_c],default=None)
        if tc is not None: s._need(tc,3)
        if op not in TRANS:
            tt=max([s.trans_w[r] for r in rd if r in s.trans_w],default=None)
            if tt is not None: s._need(tt,1)
        if op.startswith("v_permlane"):
            tv=max([s.valu_w[r] for r in rd if r in s.valu_w],default=None)
            if tv is not None: s._need(tv,2)
        if op.startswith("v_readfirstlane") or op.startswith("v_readlane"):
            tv=max([s.valu_w[r] for r in rd if r in s.valu_w],default=None)
            if tv is not None: s._need(tv,1)
        ts=max([s.valu_sw[r] for r in rd if r in s.valu_sw],default=None)
        if ts is not None: s._need(ts,2)
        if "vcc" in [str(x) for x in src] and ("s",-1) in s.valu_sw: s._need(s.valu_sw[("s",-1)],2)
        tw=max([s.store_r[r] for r in wr if r in s.store_r],default=None)
        if tw is not None: s._need(tw,2)
        s._emit(f"{op} "+", ".join(_txt(o) for o in (dst,)+src)+(" "+mods if mods else ""))
        t=s.t-1
        for r in wr:
            if r[0]=="s": s.valu_sw[r]=t
            else:
                s.valu_w[r]=t
                s.mfma_w.pop(r,None)
                if op in TRANS: s.trans_w[r]=t
                else: s.trans_w.pop(r,None)
        if str(dst)=="vcc": s.valu_sw[("s",-1)]=t
    def mfma(s,d,a,b,c):
        rd_ab=_regs([a,b]); rc=_regs([c]); wr=_regs([d])
        s._sync_regs(rd_ab+rc+wr)
        t=max([s.mfma_w[r][0] for r in rd_ab if r in s.mfma_w],default=None)
        if t is not None: s._need(t,8)
        for r in rc+wr:
            if r in s.mfma_w and s.mfma_w[r][1]!=(d.k,d.b): s._need(s.mfma_w[r][0],8)
        if rc: assert (c.k,c.b,c.n)==(d.k,d.b,d.n)
        tv=max([s.valu_w[r] for r in rd_ab+rc if r in s.valu_w],default=None)
        if tv is not None: s._need(tv,2)
        s._emit(f"v_mfma_f32_16x16x32_bf16 {d}, {a}, {b}, {c}")
        t=s.t-1; s.nmfma+=1
        for r in wr: s.mfma_w[r]=(t,(d.k,d.b)); s.valu_w.pop(r,None); s.trans_w.pop(r,None)
        for r in rc: s.mfma_c[r]=t
    def ds_read(s,op,dst,addr,offset=0):
        assert 0<=offset<65536, offset
        wr=_regs([dst]); rd=_regs([addr])
        s._sync_regs(rd+wr); s._mfma_dist(rd+wr,8)
        s._emit(f"{op} {dst}, {addr}"+(f" offset:{offset}" if offset else ""))
        s.lg+=1
        for r in wr:
            s.pend[r]=("lg",s.lg); s.mfma_w.pop(r,None); s.valu_w.pop(r,None); s.trans_w.pop(r,None)
        return s.lg
    def ds_write(s,op,addr,data,offset=0):
        assert 0<=offset<65536, offset
        rd=_regs([addr,data])
        s._sync_regs(rd); s._mfma_dist(rd,8)
        s._emit(f"{op} {addr}, {data}"+(f" offset:{offset}" if offset else ""))
        s.lg+=1
        return s.lg
    def _vm_pre(s,rd,sregs):
        s._sync_regs(rd); s._mfma_dist(rd,8)
        ts=max([s.valu_sw[r] for r in sregs if r in s.valu_sw],default=None)
        if ts is not None: s._need(ts,5)
    def dma(s,voff,srd,soff,offset=0,flags=""):
        assert 0<=offset<4096
        s._vm_pre(_regs([voff]),_regs([srd,soff]))
        s._need(s.m0_t,1)
        s._emit(f"buffer_load_dwordx4 {voff}, {srd}, {soff} offen"+(f" offset:{offset}" if offset else "")+(" "+flags if flags else "")+" lds")
        s.vm+=1; return s.vm
    def bload(s,op,dst,voff,srd,soff,offset=0,flags=""):
        assert 0<=offset<4096
        wr=_regs([dst])
        s._vm_pre(_regs([voff])+wr,_regs([srd,soff]))
        s._emit(f"{op} {dst}, {voff}, {srd}, {soff} offen"+(f" offset:{offset}" if offset else "")+(" "+flags if flags else ""))
        s.vm+=1
        for r in wr:
            s.pend[r]=("vm",s.vm); s.mfma_w.pop(r,None); s.valu_w.pop(r,None)
        return s.vm
    def bstore(s,op,data,voff,srd,soff,offset=0,flags=""):
        assert 0<=offset<4096
        s._vm_pre(_regs([voff,data]),_regs([srd,soff]))
        s._emit(f"{op} {data}, {voff}, {srd}, {soff} offen"+(f" offset:{offset}" if offset else "")+(" "+flags if flags else ""))
        s.vm+=1
        if data.n>=3:
            for r in data.regs(): s.store_r[r]=s.t-1
        return s.vm
    def batomic(s,op,data,voff,srd,soff,offset=0,flags=""):
        s._vm_pre(_regs([voff,data]),_regs([srd,soff]))
        s._emit(f"{op} {data}, {voff}, {srd}, {soff} offen"+(f" offset:{offset}" if offset else "")+(" "+flags if flags else ""))
        s.vm+=1
        if "sc0" in flags:
            for r in data.regs(): s.pend[r]=("vm",s.vm)
        return s.vm

def interleave(main, side, lead=0, tail=0):
    n=len(main); m=len(side)
    lo=lead; hi=max(lo+1,n-tail)
    span=hi-lo
    k=0
    for idx,f in enumerate(main):
        f()
        if idx>=lo:
            want=m if idx>=hi-1 else ((idx-lo+1)*m+span-1)//span
            while k<want:
                side[k](); k+=1
    while k<m:
        side[k](); k+=1
```

```python
import sys, math, struct
from asmgen import *

OPT = dict(nt_kv="", nt_xw="", part_bf16=False)
for a in sys.argv[2:]:
    k,v=a.split("="); OPT[k]=v
NT_KV=OPT["nt_kv"]; NT_XW=OPT["nt_xw"]

def fbits(x): return struct.unpack("<I",struct.pack("<f",x))[0]
PART_OFF = 16*1024*1024

def srd(g, dst, ptr, off_sreg, nbytes):
    if off_sreg is None:
        g.salu("s_mov_b32", dst[0], ptr[0]); g.salu("s_and_b32", dst[1], ptr[1], "0xffff")
    else:
        g.salu("s_add_u32", dst[0], ptr[0], off_sreg); g.salu("s_addc_u32", dst[1], ptr[1], 0)
        g.salu("s_and_b32", dst[1], dst[1], "0xffff")
    g.salu("s_mov_b32", dst[2], nbytes); g.salu("s_mov_b32", dst[3], "0x00020000")

def header(g, name):
    g.raw(f".globl {name}"); g.raw(".p2align 8"); g.raw(f".type {name},@function"); g.raw(f"{name}:")
def descriptor(name, vgpr, accum, sgpr=102):
    return f""".section .rodata,"a"
.p2align 6
.amdhsa_kernel {name}
  .amdhsa_next_free_vgpr {vgpr}
  .amdhsa_next_free_sgpr {sgpr}
  .amdhsa_accum_offset {accum}
  .amdhsa_group_segment_fixed_size 0
  .amdhsa_kernarg_size 64
  .amdhsa_user_sgpr_count 2
  .amdhsa_user_sgpr_kernarg_segment_ptr 1
  .amdhsa_system_sgpr_workgroup_id_x 1
.end_amdhsa_kernel
.text
"""
PX,PK,PV,PWQ,PWO,POUT,PDBG,PWS = [S(64+2*i,2) for i in range(8)]

def k1(g):
    g.reset()
    name="k1_kernel"
    header(g,name)
    sX,sW,sK,sV,sO = S(8,4),S(12,4),S(16,4),S(20,4),S(24,4)
    sw,si,sj,sb,sh = S(28),S(29),S(30),S(31),S(32)
    st0,st1 = S(33),S(3)
    mX,mW,mK,mV = S(34),S(35),S(36),S(37)
    oX,oW,oK,oV = S(38),S(39),S(40),S(41)
    sC = S(42)
    lane=V(0); t1=V(1)
    Kd=[V(2+i) for i in range(3)]; Vd=[V(5+i) for i in range(4)]
    Kr=[V(9),V(10)]; mx=[V(11+i) for i in range(5)]; tmp=[V(16+i) for i in range(4)]
    Vr=[V(20+i) for i in range(4)]
    Xd=[V(24+i) for i in range(5)]; Wd=[V(29+i) for i in range(6)]
    Xrb=[V(35),V(36)]; Xr=[V(37),V(38)]; Wrb=[V(39+i) for i in range(6)]; Wr=[V(45+i) for i in range(6)]
    Qw=[V(51+i) for i in range(6)]; Qr=[V(57),V(58)]
    T=[V(59+i) for i in range(13)]
    A_SLOT={0:90112,1:0,2:45056}
    def xw_slot(s): return A_SLOT[s%3]
    KSLOT={0:11,1:12,2:0,3:1,4:2,5:3,6:4,7:5,8:6,9:7,10:8,11:9,12:10,13:11,14:12,15:0}
    def kslot(u): return 12288*KSLOT[u]
    def vslot(sg): return 12288+16384*(sg if sg<9 else sg-9)
    QB=73728; MISC=159744; EX=61440

    g.salu("s_cmp_ge_u32", S(2), 256); g.raw("    s_cbranch_scc1 K1_END"); g.t+=1
    g.raw("    s_load_dwordx16 s[64:79], s[0:1], 0"); g.t+=1
    g.valu("v_lshrrev_b32", t1, 6, V(0))
    g.valu("v_and_b32", lane, 63, V(0))
    g.valu("v_readfirstlane_b32", sw, t1)
    g.salu("s_and_b32", st0, S(2), 7); g.salu("s_lshr_b32", st1, S(2), 3)
    g.salu("s_lshr_b32", sb, st1, 2); g.salu("s_and_b32", st1, st1, 3)
    g.salu("s_lshl_b32", st0, st0, 2); g.salu("s_add_u32", sh, st0, st1)
    g.salu("s_and_b32", si, sw, 1); g.salu("s_lshr_b32", sj, sw, 1)
    g.salu("s_mul_i32", mX, sw, 5120); g.salu("s_mul_i32", mW, sw, 6144); g.salu("s_add_u32", mW, mW, 20480)
    g.salu("s_mul_i32", mK, sw, 3072); g.salu("s_lshl_b32", mV, sw, 12)
    a,b_,c=T[0],T[1],T[2]
    g.valu("v_lshrrev_b32", a, 3, lane); g.valu("v_mul_u32_u24", a, 1280, a)
    g.valu("v_lshrrev_b32", b_, 4, lane); g.valu("v_and_b32", c, 7, lane); g.valu("v_xor_b32", b_, b_, c)
    g.valu("v_lshl_add_u32", a, b_, 4, a)
    for p in range(5):
        g.salu("s_add_u32", st0, sw, p); g.salu("s_and_b32", st0, st0, 1); g.salu("s_lshl_b32", st0, st0, 6)
        g.valu("v_xor_b32", Xd[p], st0, a)
        g.salu("s_mul_i32", st1, sw, 51200); g.salu("s_add_u32", st1, st1, p*10240-1024*(p%4))
        g.valu("v_add_u32", Xd[p], st1, Xd[p])
    g.raw("    s_waitcnt lgkmcnt(0)"); g.t+=1
    g.salu("s_mul_i32", st0, sb, 204800); srd(g, sX, PX, st0, 204800)
    def issue_x(s):
        items=[]
        base=xw_slot(s)
        def mk(p):
            def f():
                if p==0: g.salu("s_mov_b32", oX, s*128)
                if p%4==0: g.salu("s_add_u32", "m0", mX, base+1024*p)
                return g.dma(Xd[p], sX, oX, offset=1024*(p%4), flags=NT_XW)
            return f
        return [mk(p) for p in range(5)]
    tok={}
    for f in issue_x(0): f()
    yv=[T[3],T[4],T[5]]; yr=[T[6],T[7],T[8]]; cc=[T[9],T[10],T[11]]
    g.salu("s_mul_i32", st1, sw, 16*12288)
    for p in range(3):
        if p==0: g.valu("v_mov_b32", yv[p], lane)
        else: g.valu("v_add_u32", yv[p], 64*p, lane)
        g.valu("v_mul_u32_u24", yr[p], 2731, yv[p]); g.valu("v_lshrrev_b32", yr[p], 16, yr[p])
        g.valu("v_mul_u32_u24", a, 24, yr[p]); g.valu("v_sub_u32", cc[p], yv[p], a)
        g.valu("v_and_b32", a, 2, yr[p]); g.valu("v_lshrrev_b32", b_, 1, yr[p]); g.valu("v_and_or_b32", a, b_, 4, a)
        g.valu("v_xor_b32", a, a, cc[p])
        g.valu("v_mul_u32_u24", b_, 12288, yr[p]); g.valu("v_lshl_add_u32", a, a, 4, b_)
        g.valu("v_add_u32", a, st1, a)
        g.valu("v_xor_b32", Wd[p+3], 64, a)
        g.valu("v_add_u32", Wd[p+3], 8*12288-1024*((p+3)%4), Wd[p+3])
        if p%4: g.valu("v_subrev_u32", Wd[p], 1024*(p%4), a)
        else: g.valu("v_mov_b32", Wd[p], a)
    g.salu("s_mul_i32", st0, sh, 384); srd(g, sW, PWQ, st0, 639*12288+384)
    def issue_w(s):
        base=xw_slot(s)
        def mk(p):
            def f():
                if p==0: g.salu("s_mov_b32", oW, s*64*12288)
                if p%4==0: g.salu("s_add_u32", "m0", mW, base+1024*p)
                return g.dma(Wd[p], sW, oW, offset=1024*(p%4), flags=NT_XW)
            return f
        return [mk(p) for p in range(6)]
    for f in issue_w(0): f()
    tok["xw",0]=g.vm
    for s in (1,2):
        for f in issue_x(s)+issue_w(s): f()
        tok["xw",s]=g.vm
    g.salu("s_and_b32", st0, sw, 1); g.salu("s_lshl_b32", st0, st0, 2); g.salu("s_mul_i32", st1, sw, 8*384)
    for p in range(3):
        g.valu("v_bfe_u32", a, yr[p], 1, 2); g.valu("v_or_b32", a, st0, a); g.valu("v_xor_b32", a, a, cc[p])
        g.valu("v_mul_u32_u24", b_, 384, yr[p]); g.valu("v_lshl_add_u32", a, a, 4, b_)
        g.valu("v_add_u32", a, st1, a)
        if p: g.valu("v_subrev_u32", Kd[p], 1024*p, a)
        else: g.valu("v_mov_b32", Kd[p], a)
    g.salu("s_lshl_b32", st0, sb, 5); g.salu("s_add_u32", st0, st0, sh)
    g.salu("s_mul_i32", S(43), st0, 61440)
    g.salu("s_mul_i32", st0, st0, 196608)
    srd(g, sK, PK, st0, 196608); srd(g, sV, PV, st0, 196608); srd(g, sO, PWS, S(43), 61440)
    def issue_k(u):
        def mk(p):
            def f():
                if p==0:
                    g.salu("s_mov_b32", oK, u*12288); g.salu("s_add_u32", "m0", mK, kslot(u))
                t=g.dma(Kd[p], sK, oK, offset=1024*p, flags=NT_KV); tok["k",u]=t
            return f
        return [mk(p) for p in range(3)]
    def issue_v(sg):
        def mk(p):
            def f():
                if p==0:
                    g.salu("s_mov_b32", oV, (sg//4)*128+(sg%4)*128*384); g.salu("s_add_u32", "m0", mV, vslot(sg))
                t=g.dma(Vd[p], sV, oV, offset=1024*p, flags=NT_KV); tok["v",sg]=t
            return f
        return [mk(p) for p in range(4)]
    for u in (0,1):
        for f in issue_k(u): f()
    g.valu("v_lshrrev_b32", a, 3, lane); g.valu("v_mul_u32_u24", a, 384, a)
    g.valu("v_lshrrev_b32", b_, 4, lane); g.valu("v_lshlrev_b32", b_, 1, b_); g.valu("v_and_b32", c, 7, lane); g.valu("v_xor_b32", b_, b_, c)
    g.valu("v_lshl_add_u32", a, b_, 4, a)
    g.salu("s_mul_i32", st1, sw, 4*3072); g.valu("v_add_u32", Vd[0], st1, a)
    for p in range(1,4): g.valu("v_add_u32", Vd[p], 2048*p, Vd[0])
    q,gg,r,cq,fq = T[3],T[4],T[5],T[6],T[7]
    g.valu("v_and_b32", q, 15, lane); g.valu("v_lshrrev_b32", gg, 4, lane)
    g.valu("v_bfe_u32", r, lane, 2, 2); g.valu("v_and_b32", cq, 3, lane); g.valu("v_lshrrev_b32", fq, 1, q)
    g.salu("s_mul_i32", st0, si, 80); g.valu("v_add_u32", T[8], st0, q)
    g.valu("v_xor_b32", a, gg, fq); g.valu("v_lshlrev_b32", b_, 7, T[8])
    g.valu("v_lshl_add_u32", Xrb[0], a, 4, b_); g.valu("v_xor_b32", Xrb[1], 64, Xrb[0])
    g.valu("v_mul_u32_u24", b_, 384, T[8]); g.valu("v_add_u32", T[9], QB, b_)
    g.valu("v_lshl_add_u32", Qr[0], a, 4, T[9]); g.valu("v_xor_b32", Qr[1], 64, Qr[0])
    g.valu("v_and_b32", a, 1, gg); g.valu("v_lshl_add_u32", T[9], a, 3, T[9])
    g.valu("v_lshrrev_b32", T[10], 1, gg)
    for tt in range(6):
        g.salu("s_mul_i32", st0, sj, 12); g.salu("s_add_u32", st0, st0, 2*tt)
        g.valu("v_add_u32", a, st0, T[10]); g.valu("v_xor_b32", a, a, fq)
        g.valu("v_lshl_add_u32", Qw[tt], a, 4, T[9])
    g.valu("v_lshl_add_u32", a, gg, 3, r); g.valu("v_mul_u32_u24", a, 384, a); g.valu("v_lshl_add_u32", a, cq, 3, a)
    g.valu("v_add_u32", T[11], 20480, a)
    g.valu("v_lshrrev_b32", a, 1, r); g.valu("v_and_b32", b_, 1, gg); g.valu("v_lshl_or_b32", T[12], b_, 1, a)
    for tt in range(6):
        g.salu("s_mul_i32", st0, sj, 6); g.salu("s_add_u32", st0, st0, tt)
        g.valu("v_xor_b32", a, st0, T[12]); g.valu("v_lshl_add_u32", Wrb[tt], a, 5, T[11])
    g.salu("s_lshl_b32", st0, sj, 4); g.valu("v_add_u32", a, st0, q); g.valu("v_mul_u32_u24", a, 384, a)
    g.valu("v_xor_b32", b_, gg, fq); g.valu("v_lshl_add_u32", a, b_, 4, a)
    g.valu("v_add_u32", Kr[0], kslot(0), a); g.valu("v_xor_b32", Kr[1], 64, Kr[0])
    g.valu("v_lshl_add_u32", a, gg, 2, r); g.valu("v_add_u32", a, st0, a); g.valu("v_lshlrev_b32", a, 7, a)
    g.valu("v_lshl_add_u32", a, cq, 3, a); g.valu("v_add_u32", T[11], vslot(0), a)
    g.valu("v_lshrrev_b32", a, 1, r); g.valu("v_lshl_add_u32", a, gg, 1, a); g.valu("v_and_b32", T[12], 3, a)
    for tau in range(4):
        g.salu("s_lshl_b32", st0, sj, 1); g.salu("s_xor_b32", st0, st0, tau)
        g.valu("v_xor_b32", a, st0, T[12]); g.valu("v_lshl_add_u32", Vr[tau], a, 5, T[11])
    g.salu("s_mov_b32", sC, hex(fbits(math.log2(math.e)/math.sqrt(192.0))))

    QACC=lambda tt,n: V(136+(tt*5+n)*4,4)
    FX=lambda b,n: A(44*b+4*n,4)
    FW=lambda b,tt: A(44*b+20+4*tt,4)
    def set_xw_addr(s):
        items=[]
        for k in range(2): items.append(lambda k=k: g.valu("v_add_u32", Xr[k], xw_slot(s), Xrb[k]))
        for k in range(6): items.append(lambda k=k: g.valu("v_add_u32", Wr[k], xw_slot(s), Wrb[k]))
        return items
    def xw_reads(ab, buf):
        items=[]
        for tt in range(6):
            for e in range(2):
                items.append(lambda tt=tt,e=e: g.ds_read("ds_read_b64_tr_b16", FW(buf,tt).sub(2*e,2), Wr[tt], (32*ab+4*e)*384))
            if tt<5: items.append(lambda n=tt: g.ds_read("ds_read_b128", FX(buf,n), Xr[ab], n*2048))
        return items
    def q_mfmas(buf, first):
        return [ (lambda tt=tt,n=n: g.mfma(QACC(tt,n), FW(buf,tt), FX(buf,n), 0 if first else QACC(tt,n))) for tt in range(6) for n in range(5)]
    g.wait_vm(tok["xw",0]); g.barrier()
    for f in set_xw_addr(0): f()
    for f in xw_reads(0,0): f()
    for s in range(10):
        interleave(q_mfmas(0, s==0), xw_reads(1,1), tail=8)
        g.wait_lg_all()
        side=[]
        if s<9:
            g.wait_vm(tok["xw",s+1]); g.barrier()
            side+=set_xw_addr(s+1)+xw_reads(0,0)
        else:
            g.barrier()
        dm=[]
        if s+3<=9:
            dm=issue_x(s+3)+issue_w(s+3)
        elif s==7: dm=issue_k(2)+issue_k(3)+issue_k(4)
        elif s==8: dm=issue_k(5)+issue_k(6)+issue_k(7)
        merged=[]; na,nb=len(side),len(dm); ia=ib=0
        while ia<na or ib<nb:
            if ib>=nb or (ia<na and ia*max(nb,1)<=ib*max(na,1)*1): merged.append(side[ia]); ia+=1
            else: merged.append(dm[ib]); ib+=1
        interleave(q_mfmas(1, False), merged, tail=4)
        if s+3<=9: tok["xw",s+3]=g.vm
    pk=[V(72+2*k,2) for k in range(8)]
    k=0
    for tt in range(6):
        for n in range(5):
            acc=QACC(tt,n); d=pk[k%8]; k+=1
            g.valu("v_cvt_pk_bf16_f32", d[0], acc[0], acc[1]); g.valu("v_cvt_pk_bf16_f32", d[1], acc[2], acc[3])
            g.ds_write("ds_write_b64", Qw[tt], d, n*6144)
    g.wait_lg_all(); g.wait_vm(tok["k",1]); g.barrier()
    QF=lambda s,n: A((s*5+n)*4,4)
    KF=lambda b,s: V(24+24*b+4*s,4)
    for s in range(6):
        for n in range(5): g.ds_read("ds_read_b128", QF(s,n), Qr[s&1], n*6144+(s>>1)*128)
    def k_reads(buf): return [ (lambda s=s: g.ds_read("ds_read_b128", KF(buf,s), Kr[s&1], (s>>1)*128)) for s in range(6)]
    def k_adv(u):
        d=kslot(u)-kslot(u-1)
        return [ (lambda k=k: g.valu("v_add_u32", Kr[k], hex(d & 0xffffffff), Kr[k])) for k in range(2)]
    for f in k_reads(0): f()
    g.wait_lg_all(); g.barrier()
    def ST(kt,n):
        t=kt*5+n
        return V(72+4*t,4) if t<46 else A(120+4*(t-46),4)
    def max_items(kt):
        items=[]
        for n in range(5):
            tile=ST(kt,n)
            if tile.k=="a":
                for r_ in range(4): items.append(lambda r_=r_,tile=tile: g.valu("v_accvgpr_read_b32", tmp[r_], tile[r_]))
                src=tmp
            else: src=[tile[r_] for r_ in range(4)]
            if kt==0:
                items.append(lambda n=n,src=src: g.valu("v_max3_f32", mx[n], src[0], src[1], src[2]))
                items.append(lambda n=n,src=src: g.valu("v_max_f32", mx[n], mx[n], src[3]))
            else:
                items.append(lambda n=n,src=src: g.valu("v_max3_f32", mx[n], mx[n], src[0], src[1]))
                items.append(lambda n=n,src=src: g.valu("v_max3_f32", mx[n], mx[n], src[2], src[3]))
        return items
    kdma={2:[13,14],4:[15]}; vdma={6:[0,1],8:[2],10:[3,4],12:[5],14:[6,7]}
    for u in range(16):
        mf=[ (lambda s=s,n=n: g.mfma(ST(u,n), KF(u&1,s), QF(s,n), 0 if s==0 else ST(u,n))) for s in range(6) for n in range(5)]
        side=[]
        if u==0:
            for k_ in range(8,13): side+=issue_k(k_)
        if u+1<=15:
            if (u+1)%2==0:
                g.wait_lg_all()
                g.wait_vm(tok["k",u+2]); g.barrier()
            side=k_adv(u+1)+k_reads((u+1)&1)+side
            if (u+1)%2==0:
                for k_ in kdma.get(u+1,[]): side+=issue_k(k_)
                for v_ in vdma.get(u+1,[]): side+=issue_v(v_)
        if u>=1: side=side+max_items(u-1)
        interleave(mf, side, lead=1, tail=2)
    for f in max_items(15): f()
    for n in range(5):
        g.valu("v_mov_b32", tmp[0], mx[n]); g.valu("v_permlane16_swap_b32", mx[n], tmp[0]); g.valu("v_max_f32", mx[n], mx[n], tmp[0])
        g.valu("v_mov_b32", tmp[0], mx[n]); g.valu("v_permlane32_swap_b32", mx[n], tmp[0]); g.valu("v_max_f32", mx[n], mx[n], tmp[0])
    sa,sb2=V(24),V(25)
    g.valu("v_and_b32", sa, 15, lane); g.valu("v_lshlrev_b32", sa, 2, sa)
    g.salu("s_mul_i32", st0, sw, 320); g.salu("s_add_u32", st0, st0, MISC); g.valu("v_add_u32", sb2, st0, sa)
    g.salu("s_xor_b32", st1, sw, 2); g.salu("s_mul_i32", st1, st1, 320); g.salu("s_add_u32", st1, st1, MISC); g.valu("v_add_u32", sa, st1, sa)
    for n in range(5): g.ds_write("ds_write_b32", sb2, mx[n], n*64)
    g.wait_lg_all(); g.barrier()
    for f in issue_v(8): f()
    pm=[V(26+n) for n in range(5)]
    for n in range(5): g.ds_read("ds_read_b32", pm[n], sa, n*64)
    for n in range(5):
        g.valu("v_max_f32", mx[n], mx[n], pm[n]); g.valu("v_mul_f32", mx[n], sC, mx[n])
    free=[]; PF={}
    tq=[V(32+4*k,4) for k in range(4)]
    tk=0
    for v in range(8):
        for n in range(5):
            ta,tb=ST(2*v,n),ST(2*v+1,n)
            src=[]
            for tile in (ta,tb):
                if tile.k=="a":
                    t=tq[tk%4]; tk+=1
                    for r_ in range(4): g.valu("v_accvgpr_read_b32", t[r_], tile[r_])
                    src+=[t[r_] for r_ in range(4)]
                else: src+=[tile[r_] for r_ in range(4)]
            for x_ in src: g.valu("v_fma_f32", x_, x_, sC, Neg(mx[n]))
            for x_ in src: g.valu("v_exp_f32", x_, x_)
            if ta.k=="v": dst=ta
            else: dst=free.pop(0)
            for r_ in range(4): g.valu("v_cvt_pk_bf16_f32", dst[r_], src[2*r_], src[2*r_+1])
            if tb.k=="v": free.append(tb)
            PF[v,n]=dst
    VF=lambda b,tau: V(24+16*b+4*tau,4)
    ONES=A(100,4)
    g.valu("v_mov_b32", tmp[0], "0x3f803f80")
    for r_ in range(4): g.valu("v_accvgpr_write_b32", ONES[r_], tmp[0])
    def OACC(blk,tau,n): return A((120 if blk==1 else 0)+(tau*5+n)*4,4)
    LT=lambda n: A(80+4*n,4)
    def v_reads(kap):
        vp=kap&1; b=kap&1
        return [ (lambda tau=tau,e=e: g.ds_read("ds_read_b64_tr_b16", VF(b,tau).sub(2*e,2), Vr[tau], (64*vp+32*e)*128)) for tau in range(4) for e in range(2)]
    def v_adv(sg):
        d=vslot(sg)-vslot(sg-1)
        return [ (lambda k=k: g.valu("v_add_u32", Vr[k], hex(d & 0xffffffff), Vr[k])) for k in range(4)]
    rl=mx
    xa,xb=V(56),V(57)
    def finalize(blk):
        g.comment(f"finalize block {blk}")
        g.valu("v_lshlrev_b32", xa, 4, lane)
        g.salu("s_mul_i32", st0, sw, 10240); g.salu("s_add_u32", st0, st0, EX); g.valu("v_add_u32", xb, st0, xa)
        for tau in (2,3):
            for n in range(5): g.ds_write("ds_write_b128", xb, OACC(blk,tau,n), ((tau-2)*5+n)*1024)
        if blk==0:
            g.valu("v_and_b32", V(58), 15, lane); g.valu("v_lshlrev_b32", V(58), 2, V(58))
            g.salu("s_mul_i32", st0, sw, 320); g.salu("s_add_u32", st0, st0, MISC+2048); g.valu("v_add_u32", V(59), st0, V(58))
            for n in range(5):
                g.valu("v_accvgpr_read_b32", rl[n], LT(n)[0]); g.ds_write("ds_write_b32", V(59), rl[n], n*64)
            g.salu("s_xor_b32", st1, sw, 2); g.salu("s_mul_i32", st1, st1, 320); g.salu("s_add_u32", st1, st1, MISC+2048); g.valu("v_add_u32", V(59), st1, V(58))
        g.salu("s_xor_b32", st1, sw, 2); g.salu("s_mul_i32", st1, st1, 10240); g.salu("s_add_u32", st1, st1, EX); g.valu("v_add_u32", xb, st1, xa)
        g.wait_lg_all(); g.barrier()
        if blk==0:
            for n in range(5): g.ds_read("ds_read_b32", V(60+n), V(59), n*64)
            for n in range(5):
                g.valu("v_add_f32", rl[n], rl[n], V(60+n)); g.valu("v_rcp_f32", rl[n], rl[n])
        g.salu("s_mul_i32", st0, sj, 10240); g.salu("s_mul_i32", st1, si, 5120); g.salu("s_add_u32", st0, st0, st1)
        g.valu("v_add_u32", xa, st0, xa); g.salu("s_mov_b32", st1, blk*20480)
        fr=[f.sub(0,4) for f in free]
        assert len(fr)>=6, len(fr)
        for n in range(5):
            p0,p1=fr[(2*n)%4],fr[(2*n+1)%4]
            g.ds_read("ds_read_b128", p0, xb, (0*5+n)*1024); g.ds_read("ds_read_b128", p1, xb, (1*5+n)*1024)
            o=[V(60+k_) for k_ in range(8)]
            for k_ in range(4): g.valu("v_accvgpr_read_b32", o[k_], OACC(blk,0,n)[k_])
            for k_ in range(4): g.valu("v_accvgpr_read_b32", o[4+k_], OACC(blk,1,n)[k_])
            for k_ in range(4): g.valu("v_add_f32", o[k_], o[k_], p0[k_])
            for k_ in range(4): g.valu("v_add_f32", o[4+k_], o[4+k_], p1[k_])
            for k_ in range(8): g.valu("v_mul_f32", o[k_], o[k_], rl[n])
            d=fr[4+(n&1)]
            for k_ in range(4): g.valu("v_cvt_pk_bf16_f32", d[k_], o[2*k_], o[2*k_+1])
            if n<4: g.bstore("buffer_store_dwordx4", d, xa, sO, st1, offset=n*1024)
            else:
                g.valu("v_add_u32", V(68), 4096, xa); g.bstore("buffer_store_dwordx4", d, V(68), sO, st1)
    g.wait_vm(tok["v",0]); g.barrier()
    for f in v_reads(0): f()
    for kap in range(24):
        blk=kap//8; v=kap%8; b=kap&1
        mf=[ (lambda tau=tau,n=n: g.mfma(OACC(blk,tau,n), VF(b,tau), PF[v,n], 0 if v==0 else OACC(blk,tau,n))) for tau in range(4) for n in range(5)]
        if blk==0: mf+=[ (lambda n=n: g.mfma(LT(n), ONES, PF[v,n], 0 if v==0 else LT(n))) for n in range(5)]
        side=[]
        if kap+1<24:
            if (kap+1)%2==0:
                sg=(kap+1)//2
                g.wait_lg_all(); g.wait_vm(tok["v",sg]); g.barrier()
                side+=v_adv(sg)
            side+=v_reads(kap+1)
            if (kap+1)%2==0 and (kap+1)//2 in (1,2,3): side+=issue_v(8+(kap+1)//2)
        interleave(mf, side, lead=1, tail=4)
        if kap==11: finalize(0)
        if kap==15: finalize(1)
        if kap==23: finalize(2)
    g.raw("K1_END:"); g.raw("    s_endpgm")
    print(f"; k1: {g.ninst} instr, {g.nmfma} mfma, {g.nops} nops", file=sys.stderr)
    g.raw(descriptor(name,512,256))

def k2(g):
    g.reset()
    name="k2_kernel"; header(g,name)
    sW,sO,sP = S(8,4),S(12,4),S(16,4)
    sw,si,sj,sb,sG,snb = S(28),S(29),S(30),S(31),S(32),S(33)
    st0,st1=S(34),S(35); mW,mO=S(36),S(37); oW,oO=S(38),S(39)
    lane=V(0); t1=V(1)
    Wd=[V(2+i) for i in range(5)]; Od=[V(7),V(8)]
    Wrb=[V(9+i) for i in range(5)]; Wr=[V(14+i) for i in range(5)]; Orb=V(19); Or=V(20)
    T=[V(21+i) for i in range(10)]
    slot=lambda s: 40960*(s%4)
    g.salu("s_cmp_ge_u32", S(2), 256); g.raw("    s_cbranch_scc1 K2_END"); g.t+=1
    g.raw("    s_load_dwordx16 s[64:79], s[0:1], 0"); g.t+=1
    g.valu("v_lshrrev_b32", t1, 6, V(0)); g.valu("v_and_b32", lane, 63, V(0)); g.valu("v_readfirstlane_b32", sw, t1)
    g.salu("s_and_b32", sG, S(2), 7); g.salu("s_lshr_b32", st1, S(2), 3); g.salu("s_lshr_b32", sb, st1, 2); g.salu("s_and_b32", snb, st1, 3)
    g.salu("s_and_b32", si, sw, 1); g.salu("s_lshr_b32", sj, sw, 1)
    g.salu("s_mul_i32", mW, sw, 5120); g.salu("s_add_u32", mO, mW, 20480)
    a,b_,c=T[0],T[1],T[2]
    g.valu("v_lshlrev_b32", a, 4, lane); g.valu("v_add_u32", Od[0], mW, a); g.valu("v_add_u32", Od[1], 4096, Od[0])
    g.salu("s_mul_i32", st1, sw, 16*1280)
    for p in range(5):
        y,yr=T[3],T[4]
        if p==0: g.valu("v_mov_b32", y, lane)
        else: g.valu("v_add_u32", y, 64*p, lane)
        g.valu("v_mul_u32_u24", yr, 3277, y); g.valu("v_lshrrev_b32", yr, 16, yr)
        g.valu("v_mul_u32_u24", a, 20, yr); g.valu("v_sub_u32", c, y, a)
        g.valu("v_lshrrev_b32", a, 1, yr); g.valu("v_and_b32", a, 2, a); g.valu("v_xor_b32", c, c, a)
        g.valu("v_mul_u32_u24", b_, 1280, yr); g.valu("v_lshl_add_u32", a, c, 4, b_); g.valu("v_add_u32", a, st1, a)
        if p%4: g.valu("v_subrev_u32", Wd[p], 1024*(p%4), a)
        else: g.valu("v_mov_b32", Wd[p], a)
    g.raw("    s_waitcnt lgkmcnt(0)"); g.t+=1
    g.salu("s_mul_i32", st0, sG, 768*1280); g.salu("s_mul_i32", st1, snb, 320); g.salu("s_add_u32", st0, st0, st1)
    srd(g, sW, PWO, st0, 767*1280+320)
    g.salu("s_lshl_b32", st0, sb, 5); g.salu("s_lshl_b32", st1, sG, 2); g.salu("s_add_u32", st0, st0, st1); g.salu("s_mul_i32", st0, st0, 61440)
    srd(g, sO, PWS, st0, 4*61440)
    g.salu("s_lshl_b32", st0, sb, 2); g.salu("s_add_u32", st0, st0, snb); g.salu("s_lshl_b32", st0, st0, 3); g.salu("s_add_u32", st0, st0, sG)
    g.salu("s_mul_i32", st0, st0, 102400); g.salu("s_add_u32", st0, st0, PART_OFF)
    srd(g, sP, PWS, st0, 102400)
    tok={}
    def issue(s):
        def mkw(p):
            def f():
                if p==0: g.salu("s_mov_b32", oW, s*64*1280)
                if p%4==0: g.salu("s_add_u32", "m0", mW, slot(s)+1024*p)
                g.dma(Wd[p], sW, oW, offset=1024*(p%4), flags=NT_XW)
            return f
        def mko(p):
            def f():
                if p==0: g.salu("s_mov_b32", oO, s*20480)
                if p%4==0: g.salu("s_add_u32", "m0", mO, slot(s)+1024*p)
                g.dma(Od[p//4], sO, oO, offset=1024*(p%4)); tok[s]=g.vm
            return f
        return [mkw(p) for p in range(5)]+[mko(p) for p in range(5)]
    for s in range(4):
        for f in issue(s): f()
    gg,r,cq=T[3],T[4],T[5]
    g.valu("v_lshrrev_b32", gg, 4, lane); g.valu("v_bfe_u32", r, lane, 2, 2); g.valu("v_and_b32", cq, 3, lane)
    g.valu("v_lshl_add_u32", a, gg, 2, r); g.valu("v_mul_u32_u24", a, 320, a); g.valu("v_lshl_add_u32", T[6], cq, 3, a)
    g.valu("v_and_b32", T[7], 1, gg)
    for u in range(5):
        g.salu("s_mul_i32", st0, sj, 5); g.salu("s_add_u32", st0, st0, u)
        g.valu("v_xor_b32", a, st0, T[7]); g.valu("v_lshl_add_u32", Wrb[u], a, 5, T[6])
    g.valu("v_lshlrev_b32", a, 4, lane); g.salu("s_mul_i32", st0, si, 5120); g.salu("s_add_u32", st0, st0, 20480); g.valu("v_add_u32", Orb, st0, a)
    ACC=lambda u,n: A((u*5+n)*4,4)
    FW=lambda b,u: V(32+40*b+4*u,4)
    FO=lambda b,n: V(32+40*b+20+4*n,4)
    def set_addr(s):
        return [ (lambda k=k: g.valu("v_add_u32", Wr[k], slot(s), Wrb[k])) for k in range(5)]+[lambda: g.valu("v_add_u32", Or, slot(s), Orb)]
    def reads(sg,buf):
        it=[]
        for u in range(5):
            for e in range(2): it.append(lambda u=u,e=e: g.ds_read("ds_read_b64_tr_b16", FW(buf,u).sub(2*e,2), Wr[u], (32*sg+16*e)*320))
            it.append(lambda n=u: g.ds_read("ds_read_b128", FO(buf,n), Or, (sg*10+n)*1024))
        return it
    def mf(buf,first): return [ (lambda u=u,n=n: g.mfma(ACC(u,n), FW(buf,u), FO(buf,n), 0 if first else ACC(u,n))) for u in range(5) for n in range(5)]
    g.wait_vm(tok[0]); g.barrier()
    for f in set_addr(0)+reads(0,0): f()
    for s in range(12):
        interleave(mf(0,s==0), reads(1,1), tail=6)
        g.wait_lg_all()
        side=[]
        if s<11:
            g.wait_vm(tok[s+1]); g.barrier()
            side=set_addr(s+1)+reads(0,0)
            if s+4<12:
                dm=issue(s+4); m=[]
                for k_ in range(max(len(side),len(dm))):
                    if k_<len(side): m.append(side[k_])
                    if k_<len(dm) and k_%2==1: m.append(dm[k_//2])
                used=len([1 for k_ in range(max(len(side),len(dm))) if k_<len(dm) and k_%2==1])
                side=m+dm[used:]
        interleave(mf(1,False), side, tail=3)
    g.valu("v_lshlrev_b32", a, 4, lane); g.salu("s_mul_i32", st0, sw, 25600); g.valu("v_add_u32", a, st0, a)
    for t in range(25):
        if t%4==0 and t: g.valu("v_add_u32", a, 4096, a)
        g.bstore("buffer_store_dwordx4", ACC(t//5,t%5), a, sP, 0, offset=(t%4)*1024)
    g.raw("K2_END:"); g.raw("    s_endpgm")
    print(f"; k2: {g.ninst} instr, {g.nmfma} mfma, {g.nops} nops", file=sys.stderr)
    g.raw(descriptor(name,512,256))

def k3(g):
    g.reset()
    name="k3_kernel"; header(g,name)
    sP,sOut=S(8,4),S(12,4)
    sw,sid,st0,st1,sbn,sw2,stile=S(28),S(29),S(30),S(31),S(32),S(33),S(34)
    lane=V(0); t1=V(1)
    g.salu("s_cmp_ge_u32", S(2), 800); g.raw("    s_cbranch_scc1 K3_END"); g.t+=1
    g.raw("    s_load_dwordx16 s[64:79], s[0:1], 0"); g.t+=1
    g.valu("v_lshrrev_b32", t1, 6, V(0)); g.valu("v_and_b32", lane, 63, V(0)); g.valu("v_readfirstlane_b32", sw, t1)
    g.nop(4); g.salu("s_lshl_b32", sid, S(2), 2); g.salu("s_add_u32", sid, sid, sw)
    g.salu("s_mul_hi_u32", st0, sid, hex((2**32+24)//25)); g.salu("s_mul_i32", st1, st0, 25); g.salu("s_sub_u32", stile, sid, st1)
    g.salu("s_and_b32", sw2, st0, 3); g.salu("s_lshr_b32", sbn, st0, 2)
    g.raw("    s_waitcnt lgkmcnt(0)"); g.t+=1
    g.salu("s_mul_i32", st0, sbn, 8*102400); g.salu("s_mul_i32", st1, sw2, 25600); g.salu("s_add_u32", st0, st0, st1)
    g.salu("s_lshl_b32", st1, stile, 10); g.salu("s_add_u32", st0, st0, st1); g.salu("s_add_u32", st0, st0, PART_OFF)
    srd(g, sP, PWS, st0, 7*102400+1024)
    srd(g, sOut, POUT, None, 1638400)
    g.valu("v_lshlrev_b32", V(2), 4, lane)
    for G in range(8):
        g.salu("s_mov_b32", S(40+G), G*102400)
        g.bload("buffer_load_dwordx4", V(8+4*G,4), V(2), sP, S(40+G))
    su,sn=S(35),S(36)
    g.salu("s_mul_i32", su, stile, 52); g.salu("s_lshr_b32", su, su, 8)
    g.salu("s_mul_i32", st0, su, 5); g.salu("s_sub_u32", sn, stile, st0)
    g.salu("s_lshr_b32", st0, sbn, 2); g.salu("s_mul_i32", st0, st0, 160)
    g.salu("s_and_b32", st1, sw2, 1); g.salu("s_mul_i32", st1, st1, 80); g.salu("s_add_u32", st0, st0, st1)
    g.salu("s_lshl_b32", st1, sn, 4); g.salu("s_add_u32", st0, st0, st1)
    g.salu("s_mul_i32", st0, st0, 1280)
    g.salu("s_and_b32", st1, sbn, 3); g.salu("s_mul_i32", st1, st1, 320); g.salu("s_add_u32", st0, st0, st1)
    g.salu("s_lshr_b32", st1, sw2, 1); g.salu("s_mul_i32", st1, st1, 160); g.salu("s_add_u32", st0, st0, st1)
    g.salu("s_lshl_b32", st1, su, 5); g.salu("s_add_u32", st0, st0, st1)
    g.valu("v_and_b32", V(3), 15, lane); g.valu("v_mul_u32_u24", V(3), 1280, V(3))
    g.valu("v_lshrrev_b32", V(4), 4, lane); g.valu("v_lshl_add_u32", V(3), V(4), 3, V(3)); g.valu("v_add_u32", V(3), st0, V(3))
    for G in range(1,8):
        for k in range(4): g.valu("v_add_f32", V(8+k), V(8+k), V(8+4*G+k))
    g.valu("v_cvt_pk_bf16_f32", V(4), V(8), V(9)); g.valu("v_cvt_pk_bf16_f32", V(5), V(10), V(11))
    g.bstore("buffer_store_dwordx2", V(4,2), V(3), sOut, 0)
    g.raw("K3_END:"); g.raw("    s_endpgm")
    g.raw(descriptor(name,40,40,64+16))

g=Gen()
g.raw("; @launch kernel=k1_kernel grid=(256,1,1) block=(256,1,1) lds=163840")
g.raw("; @launch kernel=k2_kernel grid=(256,1,1) block=(256,1,1) lds=163840")
g.raw("; @launch kernel=k3_kernel grid=(800,1,1) block=(256,1,1) lds=0")
g.raw('.amdgcn_target "amdgcn-amd-amdhsa--gfx950"'); g.raw(".text")
k1(g); k2(g); k3(g)
open(sys.argv[1],"w").write(g.text())
```
